```python
import torch

def _softmax(x, axis=-1):
    return torch.softmax(x, dim=axis)
def _gelu(x):
    return torch.nn.functional.gelu(x, approximate="tanh")
def _silu(x):
    return torch.nn.functional.silu(x)
def _sigmoid(x):
    return torch.sigmoid(x)
def _layernorm(x, axis=-1, eps=1e-5):
    m = x.mean(dim=axis, keepdim=True)
    v = x.var(dim=axis, keepdim=True, unbiased=False)
    return (x - m) / torch.sqrt(v + eps)
def _scatter_add(tgt, idx, src, axis=0):
    return tgt.clone().index_add_(axis, idx, src)
def _segment_sum(src, seg, n):
    out = torch.zeros((n,) + src.shape[1:], dtype=src.dtype)
    return out.index_add_(0, seg, src)
def _pad(x, pw):
    flat = tuple(v for pair in reversed(pw) for v in pair)
    return torch.nn.functional.pad(x, flat)

kernel_name = 'parallel_sum__sliding_block_cached__dense_activation_gelu__decode'

def setup_inputs():

    _w = (lambda a: (lambda t: t.to(torch.bfloat16) if t.is_floating_point() else t)(torch.as_tensor(a)))
    def _A_setup():
        B, Sq, D = 8, 1, 512
        Hq, Hkv, Sk, Dh = 32, 8, 4096, 128
        assert Hq % Hkv == 0, (Hq, Hkv)
        return {
            "x": _w((lambda *s: torch.randn(*s, dtype=torch.bfloat16) * 0.05)(B, Sq, D)),
            "k_cache": _w((lambda *s: torch.randn(*s, dtype=torch.bfloat16) * 3.2)(B, Hkv, Sk, Dh)),
            "v_cache": _w((lambda *s: torch.randn(*s, dtype=torch.bfloat16) * 0.8)(B, Hkv, Sk, Dh)),
            "wq": _w((lambda *s: torch.randn(*s, dtype=torch.bfloat16) * 3.2)(D, Hq * Dh) * (D ** -0.5)),
            "wo": _w((lambda *s: torch.randn(*s, dtype=torch.bfloat16) * 0.8)(Hq * Dh, D) * ((Hq * Dh) ** -0.5)),
        }
    _A_in = _A_setup()

    def _B_setup():
        B, S, D, F = 8, 1, 512, 1792
        return {
            "x": _w((lambda *s: torch.randn(*s, dtype=torch.bfloat16) * 0.05)(B, S, D)),
            "w1": _w((lambda *s: torch.randn(*s, dtype=torch.bfloat16) * 3.2)(D, F) * (D ** -0.5)),
            "b1": _w((lambda *s: torch.randn(*s, dtype=torch.bfloat16) * 3.2)(F) * 0.01),
            "w2": _w((lambda *s: torch.randn(*s, dtype=torch.bfloat16) * 0.4)(F, D) * (F ** -0.5)),
            "b2": _w((lambda *s: torch.randn(*s, dtype=torch.bfloat16) * 0.4)(D) * 0.01),
        }
    _B_in = _B_setup()

    return {
        "A_x": _A_in["x"],
        "A_k_cache": _A_in["k_cache"],
        "A_v_cache": _A_in["v_cache"],
        "A_wq": _A_in["wq"],
        "A_wo": _A_in["wo"],
        "B_x": _B_in["x"],
        "B_w1": _B_in["w1"],
        "B_b1": _B_in["b1"],
        "B_w2": _B_in["w2"],
        "B_b2": _B_in["b2"],
    }

def reference(A_x, A_k_cache, A_v_cache, A_wq, A_wo, B_x, B_w1, B_b1, B_w2, B_b2):
    def _A_ref(x, k_cache, v_cache, wq, wo):
        B, Sq, D = x.shape
        Hq, Dh = 32, 128
        Hkv, Sk = k_cache.shape[1], k_cache.shape[2]
        W = min(4096, max(256, Sk // 4))
        rep = Hq // Hkv
        q = (lambda x, *d: x.permute(*d))((x @ wq).reshape(B, Sq, Hq, Dh), 0, 2, 1, 3)
        k = (lambda x, n, axis: torch.repeat_interleave(x, n, dim=axis))(k_cache[:, :, Sk - W:, :], rep, axis=1)
        v = (lambda x, n, axis: torch.repeat_interleave(x, n, dim=axis))(v_cache[:, :, Sk - W:, :], rep, axis=1)
        scores = torch.einsum("bhqd,bhkd->bhqk", q, k) * (Dh ** -0.5)
        p = _softmax(scores, axis=-1)
        o = torch.einsum("bhqk,bhkd->bhqd", p, v)
        return (lambda x, *d: x.permute(*d))(o, 0, 2, 1, 3).reshape(B, Sq, Hq * Dh) @ wo

    def _B_ref(x, w1, b1, w2, b2):
        h = torch.einsum("bsd,df->bsf", x, w1) + b1
        h = _gelu(h)
        return torch.einsum("bsf,fd->bsd", h, w2) + b2

    x = A_x
    xn = _layernorm(x, axis=-1)
    return x + _A_ref(xn, A_k_cache, A_v_cache, A_wq, A_wo) + _B_ref(xn, B_w1, B_b1, B_w2, B_b2)
```

```python
import sys
OUT = "parallel_sum__sliding_block_cached__dense_activation_gelu__decode.s"
NAME = "parallel_sum__sliding_block_cached__dense_activation_gelu__decode"

L = []
def e(s=""): L.append(s)

WS_QP  = 0
WS_HP  = 0x80000
WS_OP  = 0x100000
WS_ML  = 0x180000
WS_ACC = 0x190000

XN_STRIDE = 1040
LDS_XN = 0
LDS_QP = 8448
LDS_HP = LDS_QP + 8192
LDS_Q  = LDS_HP + 8192
Q_STRIDE = 272
LDS_PO = LDS_Q + 4*Q_STRIDE + 64
LDS_PM = LDS_PO + 8192
K1_LDS = LDS_PM + 256

SCALE_LOG2E = 0.08838834764831845 * 1.4426950408889634

import struct
def f2u(x): return struct.unpack("<I", struct.pack("<f", x))[0]

def nops(n):
    while n > 0:
        k = min(n, 16)
        e(f"    s_nop {k-1}")
        n -= k

def xor_reduce32(v, tmp, op):
    for m in (1, 2, 4, 8, 16):
        e(f"    ds_swizzle_b32 {tmp}, {v} offset:{(m<<10)|0x1f}")
        e(f"    s_waitcnt lgkmcnt(0)")
        e(f"    {op} {v}, {v}, {tmp}")

def gemv_slice(Lreg, A, Dbase, perm0):
    for d in range(4):
        half = d >> 1
        sel = "s20" if (d & 1) == 0 else "s21"
        for p in range(4):
            a = Lreg + (2*p)*2 + half
            b = Lreg + (2*p+1)*2 + half
            e(f"    v_perm_b32 v{perm0+p}, v{b}, v{a}, {sel}")
        e(f"    s_nop 1")
        e(f"    v_mfma_f32_16x16x32_bf16 v[{Dbase+4*d}:{Dbase+4*d+3}], v[{A}:{A+3}], v[{perm0}:{perm0+3}], 0")
        e(f"    s_nop 3")

def header():
    e("; Kernarg: in[0..9], out(80), dbg(88), ws(96)")
    e("; @launch kernel=k1_front_kernel grid=(256,1,1) block=(320,1,1) lds=%d" % K1_LDS)
    e("; @launch kernel=%s_kernel grid=(256,1,1) block=(256,1,1) lds=%d" % (NAME, K2_LDS))
    e('.amdgcn_target "amdgcn-amd-amdhsa--gfx950"')
    e(".text")

def k1():
    e(".globl k1_front_kernel")
    e(".p2align 8")
    e(".type k1_front_kernel,@function")
    e("k1_front_kernel:")
    e("    s_cmp_ge_u32 s2, 256")
    e("    s_cbranch_scc1 K1_END")
    e("    s_load_dwordx4 s[4:7], s[0:1], 0      ; x, K")
    e("    s_load_dwordx4 s[8:11], s[0:1], 16    ; V, wq")
    e("    s_load_dwordx2 s[12:13], s[0:1], 48   ; w1")
    e("    s_load_dwordx4 s[16:19], s[0:1], 88")
    e("    s_mov_b32 s20, 0x05040100")
    e("    s_mov_b32 s21, 0x07060302")
    e("    s_lshr_b32 s22, s2, 5                 ; kvh")
    e("    s_and_b32 s23, s2, 31                 ; j")
    e("    s_lshr_b32 s24, s23, 2                ; b")
    e("    s_and_b32 s25, s23, 3                 ; split")
    e("    s_and_b32 s26, s23, 7                 ; colblk")
    e("    s_lshr_b32 s27, s23, 3                ; ks")
    e("    v_and_b32 v1, 63, v0                  ; lane")
    e("    v_lshrrev_b32 v2, 6, v0               ; wave")
    e("    v_lshrrev_b32 v3, 4, v1               ; g")
    e("    v_and_b32 v4, 15, v1                  ; c")
    e("    v_readfirstlane_b32 s28, v2")
    e("    s_waitcnt lgkmcnt(0)")
    e("    s_cmp_eq_u32 s28, 4")
    e("    s_cbranch_scc1 K1_HELPER")
    e("    v_lshlrev_b32 v5, 5, v0               ; t*32 (row*1024 + (t&31)*32)")
    e("    global_load_dwordx4 v[8:11], v5, s[4:5]")
    e("    global_load_dwordx4 v[12:15], v5, s[4:5] offset:16")
    e("    s_lshl_b32 s29, s27, 7                ; ks*128")
    e("    s_lshl_b32 s30, s28, 5                ; w*32")
    e("    s_add_u32 s29, s29, s30")
    e("    v_lshlrev_b32 v6, 3, v3               ; g*8")
    e("    v_add_u32 v6, s29, v6")
    e("    v_lshlrev_b32 v7, 13, v6              ; row*8192")
    e("    s_lshl_b32 s30, s22, 10               ; kvh*512*2")
    e("    s_lshl_b32 s31, s26, 7                ; colblk*64*2")
    e("    s_add_u32 s30, s30, s31")
    e("    v_lshlrev_b32 v16, 3, v4              ; c*8 bytes")
    e("    v_add_u32 v7, v7, v16")
    e("    v_add_u32 v7, s30, v7")
    for j in range(8):
        if j:
            e(f"    v_add_u32 v7, 0x2000, v7")
        e(f"    global_load_dwordx2 v[{16+2*j}:{17+2*j}], v7, s[10:11]")
    e("    s_cmp_lt_u32 s2, 112")
    e("    s_cbranch_scc0 K1_NOW1")
    e("    s_and_b32 s33, s2, 3                  ; h ks")
    e("    s_lshr_b32 s34, s2, 2                 ; h colblk")
    e("    s_lshl_b32 s29, s33, 7")
    e("    s_lshl_b32 s30, s28, 5")
    e("    s_add_u32 s29, s29, s30")
    e("    v_lshlrev_b32 v6, 3, v3")
    e("    v_add_u32 v6, s29, v6                 ; row")
    e("    s_movk_i32 s35, 3584")
    e("    v_mul_lo_u32 v7, v6, s35")
    e("    s_lshl_b32 s30, s34, 7")
    e("    v_lshlrev_b32 v6, 3, v4")
    e("    v_add_u32 v7, v7, v6")
    e("    v_add_u32 v7, s30, v7")
    for j in range(8):
        if j:
            e(f"    v_add_u32 v7, 0xe00, v7")
        e(f"    global_load_dwordx2 v[{32+2*j}:{33+2*j}], v7, s[12:13]")
    e("K1_NOW1:")
    e("    s_lshl_b32 s29, s24, 3")
    e("    s_add_u32 s29, s29, s22")
    e("    s_lshl_b32 s29, s29, 20")
    e("    s_lshl_b32 s30, s25, 16               ; split*256*256")
    e("    s_add_u32 s29, s29, s30")
    e("    s_lshl_b32 s30, s28, 14               ; w*64*256")
    e("    s_add_u32 s29, s29, s30")
    e("    s_add_u32 s29, s29, 0xc0000           ; 3072*256")
    e("    s_add_u32 s6, s6, s29")
    e("    s_addc_u32 s7, s7, 0")
    e("    s_add_u32 s8, s8, s29")
    e("    s_addc_u32 s9, s9, 0")
    e("    v_lshlrev_b32 v6, 8, v4")
    e("    v_lshlrev_b32 v7, 4, v3")
    e("    v_add_u32 v6, v6, v7")
    for t in range(4):
        if t:
            e("    v_add_u32 v6, 0x1000, v6")
        for s in range(4):
            r = 64 + (t*4+s)*4
            e(f"    global_load_dwordx4 v[{r}:{r+3}], v6, s[6:7] offset:{s*64}")
    e("    v_lshlrev_b32 v6, 10, v3              ; g*4*256")
    e("    v_lshlrev_b32 v7, 4, v4")
    e("    v_add_u32 v6, v6, v7")
    for u in range(2):
        for jh in range(2):
            if u or jh:
                e("    v_add_u32 v6, 0x1000, v6")
            for jl in range(4):
                r = 128 + (u*8 + jh*4 + jl)*4
                e(f"    global_load_dwordx4 v[{r}:{r+3}], v6, s[8:9] offset:{jl*256}")
    e("    s_cmp_lt_u32 s2, 112")
    e("    s_cbranch_scc0 K1_WX2")
    e("    s_waitcnt vmcnt(48)")
    e("    s_branch K1_WX3")
    e("K1_WX2:")
    e("    s_waitcnt vmcnt(40)")
    e("K1_WX3:")
    for i in range(8):
        e(f"    v_lshlrev_b32 v{192+2*i}, 16, v{8+i}")
        e(f"    v_and_b32 v{193+2*i}, 0xffff0000, v{8+i}")
    e("    v_add_f32 v208, v192, v193")
    for i in range(2, 16):
        e(f"    v_add_f32 v208, v208, v{192+i}")
    xor_reduce32("v208", "v209", "v_add_f32")
    e("    v_mul_f32 v208, 0x3b000000, v208      ; /512")
    for i in range(16):
        e(f"    v_sub_f32 v{192+i}, v{192+i}, v208")
    e("    v_mul_f32 v210, v192, v192")
    for i in range(1, 16):
        e(f"    v_fmac_f32 v210, v{192+i}, v{192+i}")
    xor_reduce32("v210", "v209", "v_add_f32")
    e("    v_mov_b32 v211, 0x3727c5ac             ; 1e-5")
    e("    v_fmac_f32 v211, 0x3b000000, v210")
    e("    v_rsq_f32 v211, v211")
    e("    s_nop 0")
    for i in range(16):
        e(f"    v_mul_f32 v{192+i}, v{192+i}, v211")
    for i in range(8):
        e(f"    v_cvt_pk_bf16_f32 v{8+i}, v{192+2*i}, v{193+2*i}")
    e("    v_lshrrev_b32 v5, 5, v0")
    e(f"    v_mul_u32_u24 v5, {XN_STRIDE}, v5")
    e("    v_and_b32 v6, 31, v0")
    e("    v_lshlrev_b32 v6, 5, v6")
    e("    v_add_u32 v5, v5, v6")
    e(f"    ds_write_b128 v5, v[8:11] offset:{LDS_XN}")
    e(f"    ds_write_b128 v5, v[12:15] offset:{LDS_XN+16}")
    e("    s_waitcnt lgkmcnt(0)")
    e("    s_barrier                              ; B1")
    e("    v_and_b32 v5, 7, v4")
    e(f"    v_mul_u32_u24 v5, {XN_STRIDE}, v5")
    e("    v_lshlrev_b32 v6, 4, v3")
    e("    v_add_u32 v5, v5, v6")
    e("    s_lshl_b32 s29, s28, 6                ; w*32*2")
    e("    v_add_u32 v5, s29, v5")
    e("    s_lshl_b32 s30, s27, 8                ; ks*128*2")
    e("    v_add_u32 v6, s30, v5")
    e(f"    ds_read_b128 v[192:195], v6 offset:{LDS_XN}")
    e("    s_cmp_lt_u32 s2, 112")
    e("    s_cbranch_scc0 K1_WQ2")
    e("    s_waitcnt vmcnt(40) lgkmcnt(0)")
    e("    s_branch K1_WQ3")
    e("K1_WQ2:")
    e("    s_waitcnt vmcnt(32) lgkmcnt(0)")
    e("K1_WQ3:")
    gemv_slice(16, 192, 200, 196)
    nops(8)
    e("    v_lshlrev_b32 v7, 10, v3              ; g*4*256")
    e("    v_lshlrev_b32 v6, 4, v4               ; 4c*4")
    e("    v_add_u32 v7, v7, v6")
    e("    s_lshl_b32 s29, s28, 11               ; w*2048")
    e("    v_add_u32 v7, s29, v7")
    e("    v_cmp_gt_u32 vcc, 32, v1")
    e("    s_and_saveexec_b64 s[36:37], vcc")
    for r in range(4):
        for d in range(4):
            e(f"    ds_write_b32 v7, v{200+4*d+r} offset:{LDS_QP + r*256 + d*4}")
    e("    s_mov_b64 exec, s[36:37]")
    e("    s_cmp_lt_u32 s2, 112")
    e("    s_cbranch_scc0 K1_NOH")
    e("    s_lshl_b32 s30, s33, 8")
    e("    v_add_u32 v6, s30, v5")
    e(f"    ds_read_b128 v[192:195], v6 offset:{LDS_XN}")
    e("    s_waitcnt vmcnt(32) lgkmcnt(0)")
    gemv_slice(32, 192, 200, 196)
    nops(8)
    e("    s_and_saveexec_b64 s[36:37], vcc")
    for r in range(4):
        for d in range(4):
            e(f"    ds_write_b32 v7, v{200+4*d+r} offset:{LDS_HP + r*256 + d*4}")
    e("    s_mov_b64 exec, s[36:37]")
    e("K1_NOH:")
    e("    s_waitcnt lgkmcnt(0)")
    e("    s_barrier                              ; B2")
    e("    s_barrier                              ; B3 (q ready)")
    e("    v_and_b32 v5, 3, v4")
    e(f"    v_mul_u32_u24 v5, {Q_STRIDE}, v5")
    e("    v_lshlrev_b32 v6, 4, v3")
    e("    v_add_u32 v5, v5, v6")
    for s in range(4):
        e(f"    ds_read_b128 v[{8+4*s}:{11+4*s}], v5 offset:{LDS_Q + s*64}")
    e("    s_waitcnt vmcnt(16) lgkmcnt(0)")
    for t in range(4):
        for s in range(4):
            r = 64 + (t*4+s)*4
            c = "0" if s == 0 else f"v[{24+4*t}:{27+4*t}]"
            e(f"    v_mfma_f32_16x16x32_bf16 v[{24+4*t}:{27+4*t}], v[{r}:{r+3}], v[{8+4*s}:{11+4*s}], {c}")
    nops(10)
    e("    v_max_f32 v40, v24, v25")
    for i in range(2, 16):
        e(f"    v_max_f32 v40, v40, v{24+i}")
    e("    v_lshlrev_b32 v41, 2, v1")
    e("    v_xor_b32 v42, 64, v41                 ; lane^16")
    e("    v_xor_b32 v43, 128, v41                ; lane^32")
    e("    ds_bpermute_b32 v44, v42, v40")
    e("    s_waitcnt lgkmcnt(0)")
    e("    v_max_f32 v40, v40, v44")
    e("    ds_bpermute_b32 v44, v43, v40")
    e("    s_waitcnt lgkmcnt(0)")
    e("    v_max_f32 v40, v40, v44")
    e(f"    v_mov_b32 v45, 0x{f2u(SCALE_LOG2E):08x}")
    e("    v_mul_f32 v46, v40, v45")
    for i in range(16):
        e(f"    v_fma_f32 v{24+i}, v{24+i}, v45, -v46")
    for i in range(16):
        e(f"    v_exp_f32 v{24+i}, v{24+i}")
    e("    s_nop 0")
    e("    v_add_f32 v47, v24, v25")
    for i in range(2, 16):
        e(f"    v_add_f32 v47, v47, v{24+i}")
    e("    ds_bpermute_b32 v44, v42, v47")
    e("    s_waitcnt lgkmcnt(0)")
    e("    v_add_f32 v47, v47, v44")
    e("    ds_bpermute_b32 v44, v43, v47")
    e("    s_waitcnt lgkmcnt(0)")
    e("    v_add_f32 v47, v47, v44                ; l")
    for u in range(2):
        for hh in range(2):
            t = 2*u + hh
            e(f"    v_cvt_pk_bf16_f32 v{48+4*u+2*hh}, v{24+4*t}, v{25+4*t}")
            e(f"    v_cvt_pk_bf16_f32 v{49+4*u+2*hh}, v{26+4*t}, v{27+4*t}")
    e("    s_waitcnt vmcnt(0)")
    for u in range(2):
        for d in range(8):
            comp = d >> 1
            sel = "s20" if (d & 1) == 0 else "s21"
            for p in range(4):
                a = 128 + (u*8 + 2*p)*4 + comp
                b = 128 + (u*8 + 2*p+1)*4 + comp
                e(f"    v_perm_b32 v{56+p}, v{b}, v{a}, {sel}")
            e("    s_nop 1")
            c = "0" if u == 0 else f"v[{192+4*d}:{195+4*d}]"
            e(f"    v_mfma_f32_16x16x32_bf16 v[{192+4*d}:{195+4*d}], v[{48+4*u}:{51+4*u}], v[56:59], {c}")
            e("    s_nop 3")
    nops(10)
    e("    v_lshlrev_b32 v5, 5, v1                ; c*32 bytes")
    e("    s_lshl_b32 s29, s28, 11")
    e("    v_add_u32 v5, s29, v5")
    e("    v_cmp_gt_u32 vcc, 16, v1")
    e("    s_and_saveexec_b64 s[36:37], vcc")
    for r in range(4):
        for d in range(8):
            e(f"    ds_write_b32 v5, v{192+4*d+r} offset:{LDS_PO + r*512 + d*4}")
    e("    v_cmp_gt_u32 vcc, 4, v1")
    e("    s_and_b64 exec, exec, vcc")
    e("    v_lshlrev_b32 v5, 3, v1")
    e("    s_lshl_b32 s29, s28, 5")
    e("    v_add_u32 v5, s29, v5")
    e("    v_mov_b32 v49, v47")
    e("    v_mov_b32 v48, v40")
    e(f"    ds_write_b64 v5, v[48:49] offset:{LDS_PM}")
    e("    s_mov_b64 exec, s[36:37]")
    e("    s_waitcnt lgkmcnt(0)")
    e("    s_barrier                              ; B4")
    e("    s_cmp_ge_u32 s28, 2")
    e("    s_cbranch_scc1 K1_END")
    e("    v_lshrrev_b32 v5, 5, v0                ; head")
    e("    v_lshlrev_b32 v6, 3, v5")
    for w in range(4):
        e(f"    ds_read_b64 v[{8+2*w}:{9+2*w}], v6 offset:{LDS_PM + w*32}")
    e("    v_lshlrev_b32 v7, 9, v5")
    e("    v_and_b32 v16, 31, v0")
    e("    v_lshlrev_b32 v16, 4, v16")
    e("    v_add_u32 v7, v7, v16")
    for w in range(4):
        e(f"    ds_read_b128 v[{20+4*w}:{23+4*w}], v7 offset:{LDS_PO + w*2048}")
    e("    s_waitcnt lgkmcnt(0)")
    e("    v_max_f32 v17, v8, v10")
    e("    v_max3_f32 v17, v17, v12, v14          ; M")
    e(f"    v_mov_b32 v45, 0x{f2u(SCALE_LOG2E):08x}")
    for w in range(4):
        e(f"    v_sub_f32 v{36+w}, v{8+2*w}, v17")
        e(f"    v_mul_f32 v{36+w}, v{36+w}, v45")
    for w in range(4):
        e(f"    v_exp_f32 v{36+w}, v{36+w}")
    e("    s_nop 0")
    e("    v_mul_f32 v19, v9, v36")
    for w in range(1, 4):
        e(f"    v_fmac_f32 v19, v{9+2*w}, v{36+w}")
    for k in range(4):
        e(f"    v_mul_f32 v{40+k}, v{20+k}, v36")
        for w in range(1, 4):
            e(f"    v_fmac_f32 v{40+k}, v{20+4*w+k}, v{36+w}")
    e("    v_mov_b32 v18, v17")
    e("    s_lshl_b32 s29, s24, 5")
    e("    s_lshl_b32 s30, s22, 2")
    e("    s_add_u32 s29, s29, s30")
    e("    s_lshl_b32 s29, s29, 2")
    e("    s_add_u32 s29, s29, s25")
    e("    v_lshlrev_b32 v6, 2, v5")
    e("    v_add_u32 v6, s29, v6")
    e("    v_lshlrev_b32 v7, 9, v6")
    e("    v_add_u32 v7, v7, v16")
    e(f"    v_add_u32 v7, 0x{WS_OP:x}, v7")
    e("    global_store_dwordx4 v7, v[40:43], s[18:19]")
    e("    v_lshlrev_b32 v7, 3, v6")
    e(f"    v_add_u32 v7, 0x{WS_ML:x}, v7")
    e("    v_and_b32 v16, 31, v0")
    e("    v_cmp_eq_u32 vcc, 0, v16")
    e("    s_and_saveexec_b64 s[36:37], vcc")
    e("    global_store_dwordx2 v7, v[18:19], s[18:19]")
    e("    s_endpgm")
    e("K1_HELPER:")
    e("    s_lshl_b32 s29, s2, 6")
    e("    v_lshlrev_b32 v5, 2, v1")
    e("    v_add_u32 v5, s29, v5")
    e(f"    v_add_u32 v5, 0x{WS_ACC:x}, v5")
    e("    v_mov_b32 v6, 0")
    e("    v_cmp_gt_u32 vcc, 16, v1")
    e("    s_and_saveexec_b64 s[36:37], vcc")
    e("    global_store_dword v5, v6, s[18:19]")
    e("    s_mov_b64 exec, s[36:37]")
    e("    s_barrier                              ; B1")
    e("    s_barrier                              ; B2")
    e("    v_lshlrev_b32 v5, 5, v1")
    for w in range(4):
        e(f"    ds_read_b128 v[{8+8*w}:{11+8*w}], v5 offset:{LDS_QP + w*2048}")
        e(f"    ds_read_b128 v[{12+8*w}:{15+8*w}], v5 offset:{LDS_QP + w*2048 + 16}")
    e("    s_waitcnt lgkmcnt(0)")
    for k in range(8):
        e(f"    v_add_f32 v{8+k}, v{8+k}, v{16+k}")
        e(f"    v_add_f32 v{24+k}, v{24+k}, v{32+k}")
        e(f"    v_add_f32 v{8+k}, v{8+k}, v{24+k}")
    e("    s_lshl_b32 s29, s22, 2")
    e("    s_add_u32 s29, s29, s27")
    e("    s_lshl_b32 s29, s29, 14")
    e("    s_lshl_b32 s30, s26, 8")
    e("    s_add_u32 s29, s29, s30")
    e("    v_lshrrev_b32 v6, 3, v1")
    e("    v_lshlrev_b32 v6, 11, v6")
    e("    v_and_b32 v7, 7, v1")
    e("    v_lshlrev_b32 v7, 5, v7")
    e("    v_add_u32 v6, v6, v7")
    e("    v_add_u32 v6, s29, v6")
    e("    global_store_dwordx4 v6, v[8:11], s[18:19] sc1")
    e("    global_store_dwordx4 v6, v[12:15], s[18:19] offset:16 sc1")
    e("    s_cmp_lt_u32 s2, 112")
    e("    s_cbranch_scc0 K1_H_NOH")
    for w in range(4):
        e(f"    ds_read_b128 v[{8+8*w}:{11+8*w}], v5 offset:{LDS_HP + w*2048}")
        e(f"    ds_read_b128 v[{12+8*w}:{15+8*w}], v5 offset:{LDS_HP + w*2048 + 16}")
    e("    s_waitcnt lgkmcnt(0)")
    for k in range(8):
        e(f"    v_add_f32 v{8+k}, v{8+k}, v{16+k}")
        e(f"    v_add_f32 v{24+k}, v{24+k}, v{32+k}")
        e(f"    v_add_f32 v{8+k}, v{8+k}, v{24+k}")
    e("    s_and_b32 s33, s2, 3")
    e("    s_lshr_b32 s34, s2, 2")
    e("    s_mul_i32 s29, s33, 57344")
    e("    s_lshl_b32 s30, s34, 8")
    e("    s_add_u32 s29, s29, s30")
    e(f"    s_add_u32 s29, s29, 0x{WS_HP:x}")
    e("    v_lshrrev_b32 v6, 3, v1")
    e("    v_mul_u32_u24 v6, 7168, v6")
    e("    v_add_u32 v6, v6, v7")
    e("    v_add_u32 v6, s29, v6")
    e("    global_store_dwordx4 v6, v[8:11], s[18:19] sc1")
    e("    global_store_dwordx4 v6, v[12:15], s[18:19] offset:16 sc1")
    e("K1_H_NOH:")
    e("    s_waitcnt vmcnt(0)")
    e("    s_lshl_b32 s29, s22, 5")
    e("    v_mov_b32 v5, s29")
    e("    v_mov_b32 v6, 1")
    e("    v_cmp_eq_u32 vcc, 0, v1")
    e("    s_and_saveexec_b64 s[36:37], vcc")
    e("    global_atomic_add v5, v6, s[16:17] sc1")
    e("    s_mov_b64 exec, s[36:37]")
    e("    s_mov_b32 s38, 200000")
    e("K1_POLL:")
    e("    global_load_dword v6, v5, s[16:17] sc1")
    e("    s_waitcnt vmcnt(0)")
    e("    v_readfirstlane_b32 s39, v6")
    e("    s_cmp_ge_u32 s39, 32")
    e("    s_cbranch_scc1 K1_POLLED")
    e("    s_sleep 2")
    e("    s_sub_u32 s38, s38, 1")
    e("    s_cmp_lg_u32 s38, 0")
    e("    s_cbranch_scc1 K1_POLL")
    e("K1_POLLED:")
    e("    s_lshl_b32 s29, s22, 16")
    e("    s_lshl_b32 s30, s24, 11")
    e("    s_add_u32 s29, s29, s30")
    e("    v_lshlrev_b32 v5, 5, v1")
    e("    v_add_u32 v5, s29, v5")
    for ks in range(4):
        e(f"    global_load_dwordx4 v[{8+8*ks}:{11+8*ks}], v5, s[18:19] sc1")
        e(f"    global_load_dwordx4 v[{12+8*ks}:{15+8*ks}], v5, s[18:19] offset:16 sc1")
        if ks < 3:
            e("    v_add_u32 v5, 0x4000, v5")
    e("    s_waitcnt vmcnt(0)")
    for k in range(8):
        e(f"    v_add_f32 v{8+k}, v{8+k}, v{16+k}")
        e(f"    v_add_f32 v{24+k}, v{24+k}, v{32+k}")
        e(f"    v_add_f32 v{8+k}, v{8+k}, v{24+k}")
    for k in range(4):
        e(f"    v_cvt_pk_bf16_f32 v{40+k}, v{8+2*k}, v{9+2*k}")
    e(f"    v_mul_u32_u24 v5, {Q_STRIDE}, v3")
    e("    v_lshlrev_b32 v6, 4, v4")
    e("    v_add_u32 v5, v5, v6")
    e(f"    ds_write_b128 v5, v[40:43] offset:{LDS_Q}")
    e("    s_waitcnt lgkmcnt(0)")
    e("    s_barrier                              ; B3")
    e("    s_barrier                              ; B4")
    e("K1_END:")
    e("    s_endpgm")

O_STRIDE = 272
LDS2_O = 0
LDS2_H = 8*O_STRIDE
H_STRIDE = 144
LDS2_P = LDS2_H + 8*H_STRIDE
K2_LDS = LDS2_P + 6*2048

def k2():
    e(f".globl {NAME}_kernel")
    e(".p2align 8")
    e(f".type {NAME}_kernel,@function")
    e(f"{NAME}_kernel:")
    e("    s_cmp_ge_u32 s2, 256")
    e("    s_cbranch_scc1 K2_END")
    e("    s_load_dwordx2 s[4:5], s[0:1], 0      ; x")
    e("    s_load_dwordx2 s[6:7], s[0:1], 32     ; wo")
    e("    s_load_dwordx4 s[8:11], s[0:1], 56    ; b1, w2")
    e("    s_load_dwordx4 s[12:15], s[0:1], 72   ; b2, out")
    e("    s_load_dwordx4 s[16:19], s[0:1], 88")
    e("    s_mov_b32 s20, 0x05040100")
    e("    s_mov_b32 s21, 0x07060302")
    e("    s_lshr_b32 s22, s2, 3                 ; h")
    e("    s_and_b32 s23, s2, 7                  ; nblk")
    e("    v_and_b32 v1, 63, v0")
    e("    v_lshrrev_b32 v2, 6, v0")
    e("    v_lshrrev_b32 v3, 4, v1               ; g")
    e("    v_and_b32 v4, 15, v1                  ; c")
    e("    v_readfirstlane_b32 s28, v2")
    e("    s_waitcnt lgkmcnt(0)")
    e("    s_lshl_b32 s29, s22, 7")
    e("    s_lshl_b32 s30, s28, 5")
    e("    s_add_u32 s29, s29, s30")
    e("    v_lshlrev_b32 v6, 3, v3")
    e("    v_add_u32 v6, s29, v6")
    e("    v_lshlrev_b32 v7, 10, v6")
    e("    s_lshl_b32 s30, s23, 7")
    e("    v_lshlrev_b32 v5, 3, v4")
    e("    v_add_u32 v7, v7, v5")
    e("    v_add_u32 v7, s30, v7")
    for j in range(8):
        if j == 4:
            e("    v_add_u32 v7, 0x1000, v7")
        e(f"    global_load_dwordx2 v[{16+2*j}:{17+2*j}], v7, s[6:7] offset:{(j&3)*1024}")
    e("    s_mul_i32 s29, s22, 56")
    e("    s_lshl_b32 s31, s28, 5")
    e("    s_add_u32 s29, s29, s31")
    e("    v_lshlrev_b32 v6, 3, v3")
    e("    v_add_u32 v6, s29, v6")
    for j in range(8):
        e(f"    v_add_u32 v7, {j}, v6")
        e("    v_min_u32 v7, 1791, v7")
        e("    v_lshlrev_b32 v7, 10, v7")
        e("    v_add_u32 v7, v7, v5")
        e("    v_add_u32 v7, s30, v7")
        e(f"    global_load_dwordx2 v[{32+2*j}:{33+2*j}], v7, s[10:11]")
    e("    v_lshrrev_b32 v8, 5, v0                ; b")
    e("    v_and_b32 v9, 31, v0")
    e("    v_lshlrev_b32 v10, 5, v8")
    e("    v_add_u32 v10, s22, v10")
    e("    v_lshlrev_b32 v10, 2, v10              ; rec0")
    e("    v_lshlrev_b32 v11, 9, v10")
    e("    v_lshlrev_b32 v12, 4, v9")
    e("    v_add_u32 v11, v11, v12")
    e(f"    v_add_u32 v11, 0x{WS_OP:x}, v11")
    for sp in range(4):
        e(f"    global_load_dwordx4 v[{48+4*sp}:{51+4*sp}], v11, s[18:19] offset:{sp*512}")
    e("    v_lshlrev_b32 v12, 3, v10")
    e(f"    v_add_u32 v12, 0x{WS_ML:x}, v12")
    e("    global_load_dwordx4 v[64:67], v12, s[18:19]")
    e("    global_load_dwordx4 v[68:71], v12, s[18:19] offset:16")
    e("    s_mul_i32 s29, s22, 224")
    e(f"    s_add_u32 s29, s29, 0x{WS_HP:x}")
    e("    v_mul_u32_u24 v13, 7168, v8")
    e("    v_min_u32 v14, 27, v9")
    e("    v_lshlrev_b32 v14, 3, v14")
    e("    v_add_u32 v13, v13, v14")
    e("    v_add_u32 v13, s29, v13")
    for ks in range(4):
        e(f"    global_load_dwordx2 v[{72+2*ks}:{73+2*ks}], v13, s[18:19]")
        if ks < 3:
            e("    v_add_u32 v13, 0xe000, v13")
    e("    s_mul_i32 s29, s22, 112")
    e("    v_lshrrev_b32 v14, 1, v14")
    e("    v_add_u32 v14, s29, v14")
    e("    global_load_dword v80, v14, s[8:9]     ; b1 pair")
    e("    s_waitcnt vmcnt(5)")
    e("    v_max_f32 v84, v64, v66")
    e("    v_max3_f32 v84, v84, v68, v70")
    e(f"    v_mov_b32 v85, 0x{f2u(SCALE_LOG2E):08x}")
    for sp in range(4):
        e(f"    v_sub_f32 v{86+sp}, v{64+2*sp}, v84")
        e(f"    v_mul_f32 v{86+sp}, v{86+sp}, v85")
    for sp in range(4):
        e(f"    v_exp_f32 v{86+sp}, v{86+sp}")
    e("    s_nop 0")
    e("    v_mul_f32 v90, v65, v86")
    for sp in range(1, 4):
        e(f"    v_fmac_f32 v90, v{65+2*sp}, v{86+sp}")
    e("    v_rcp_f32 v90, v90")
    for k in range(4):
        e(f"    v_mul_f32 v{92+k}, v{48+k}, v86")
        for sp in range(1, 4):
            e(f"    v_fmac_f32 v{92+k}, v{48+4*sp+k}, v{86+sp}")
    for k in range(4):
        e(f"    v_mul_f32 v{92+k}, v{92+k}, v90")
    e("    v_cvt_pk_bf16_f32 v92, v92, v93")
    e("    v_cvt_pk_bf16_f32 v93, v94, v95")
    e(f"    v_mul_u32_u24 v11, {O_STRIDE}, v8")
    e("    v_lshlrev_b32 v12, 3, v9")
    e("    v_add_u32 v11, v11, v12")
    e(f"    ds_write_b64 v11, v[92:93] offset:{LDS2_O}")
    e("    s_waitcnt vmcnt(0)")
    e("    v_add_f32 v72, v72, v74")
    e("    v_add_f32 v73, v73, v75")
    e("    v_add_f32 v76, v76, v78")
    e("    v_add_f32 v77, v77, v79")
    e("    v_add_f32 v72, v72, v76")
    e("    v_add_f32 v73, v73, v77")
    e("    v_lshlrev_b32 v81, 16, v80")
    e("    v_and_b32 v82, 0xffff0000, v80")
    e("    v_add_f32 v72, v72, v81")
    e("    v_add_f32 v73, v73, v82")
    e(f"    v_mov_b32 v81, 0x{f2u(0.044715):08x}")
    e(f"    v_mov_b32 v82, 0x{f2u(-2*0.7978845608028654*1.4426950408889634):08x}")
    for k in range(2):
        e(f"    v_mul_f32 v{74+k}, v{72+k}, v{72+k}")
        e(f"    v_mul_f32 v{74+k}, v{74+k}, v81")
        e(f"    v_fma_f32 v{74+k}, v{74+k}, v{72+k}, v{72+k}")
        e(f"    v_mul_f32 v{74+k}, v{74+k}, v82")
        e(f"    v_exp_f32 v{74+k}, v{74+k}")
        e("    s_nop 0")
        e(f"    v_add_f32 v{74+k}, 1.0, v{74+k}")
        e(f"    v_rcp_f32 v{74+k}, v{74+k}")
        e("    s_nop 0")
        e(f"    v_mul_f32 v{72+k}, v{72+k}, v{74+k}")
    e("    v_cvt_pk_bf16_f32 v72, v72, v73")
    e("    v_mov_b32 v73, 0")
    e(f"    v_mul_u32_u24 v11, {H_STRIDE}, v8")
    e("    v_lshlrev_b32 v12, 2, v9")
    e("    v_add_u32 v11, v11, v12")
    e("    v_cmp_gt_u32 vcc, 28, v9")
    e("    v_cndmask_b32 v72, v73, v72, vcc")
    e(f"    ds_write_b32 v11, v72 offset:{LDS2_H}")
    e("    s_waitcnt lgkmcnt(0)")
    e("    s_barrier")
    e("    v_and_b32 v5, 7, v4")
    e(f"    v_mul_u32_u24 v6, {O_STRIDE}, v5")
    e("    v_lshlrev_b32 v7, 4, v3")
    e("    v_add_u32 v6, v6, v7")
    e("    s_lshl_b32 s29, s28, 6")
    e("    v_add_u32 v6, s29, v6")
    e(f"    ds_read_b128 v[100:103], v6 offset:{LDS2_O}")
    e(f"    v_mul_u32_u24 v6, {H_STRIDE}, v5")
    e("    v_add_u32 v6, v6, v7")
    e("    v_add_u32 v6, s29, v6")
    e(f"    ds_read_b128 v[104:107], v6 offset:{LDS2_H}")
    e("    s_waitcnt lgkmcnt(0)")
    gemv_slice(16, 100, 112, 108)
    nops(8)
    e("    v_lshlrev_b32 v7, 10, v3")
    e("    v_lshlrev_b32 v6, 4, v4")
    e("    v_add_u32 v7, v7, v6")
    e("    s_lshl_b32 s29, s28, 11")
    e("    v_add_u32 v7, s29, v7")
    e("    v_cmp_gt_u32 vcc, 32, v1")
    e("    s_and_saveexec_b64 s[36:37], vcc")
    for r in range(4):
        for d in range(4):
            e(f"    ds_write_b32 v7, v{112+4*d+r} offset:{LDS2_P + r*256 + d*4}")
    e("    s_mov_b64 exec, s[36:37]")
    e("    s_cmp_ge_u32 s28, 2")
    e("    s_cbranch_scc1 K2_NOW2")
    gemv_slice(32, 104, 112, 108)
    nops(8)
    e("    s_and_saveexec_b64 s[36:37], vcc")
    for r in range(4):
        for d in range(4):
            e(f"    ds_write_b32 v7, v{112+4*d+r} offset:{LDS2_P + 4*2048 + r*256 + d*4}")
    e("    s_mov_b64 exec, s[36:37]")
    e("K2_NOW2:")
    e("    s_waitcnt lgkmcnt(0)")
    e("    s_barrier")
    e("    v_lshlrev_b32 v5, 3, v0")
    for p in range(6):
        e(f"    ds_read_b64 v[{8+2*p}:{9+2*p}], v5 offset:{LDS2_P + p*2048}")
    e("    s_waitcnt lgkmcnt(0)")
    for p in range(1, 6):
        e(f"    v_add_f32 v8, v8, v{8+2*p}")
        e(f"    v_add_f32 v9, v9, v{9+2*p}")
    e("    v_lshrrev_b32 v6, 5, v0")
    e("    v_lshlrev_b32 v6, 11, v6               ; b*512*4")
    e("    v_and_b32 v7, 31, v0")
    e("    v_lshlrev_b32 v7, 3, v7")
    e("    v_add_u32 v6, v6, v7")
    e("    s_lshl_b32 s29, s23, 8")
    e("    v_add_u32 v6, s29, v6")
    e(f"    v_add_u32 v10, 0x{WS_ACC:x}, v6")
    e("    global_atomic_add_f32 v10, v8, s[18:19] sc1")
    e("    global_atomic_add_f32 v10, v9, s[18:19] offset:4 sc1")
    e("    s_waitcnt vmcnt(0)")
    e("    s_barrier")
    e("    s_cmp_lg_u32 s28, 0")
    e("    s_cbranch_scc1 K2_W1")
    e("    s_lshl_b32 s29, s23, 5")
    e("    v_mov_b32 v11, s29")
    e("    v_mov_b32 v12, 1")
    e("    v_cmp_eq_u32 vcc, 0, v1")
    e("    s_and_saveexec_b64 s[36:37], vcc")
    e("    global_atomic_add v12, v11, v12, s[16:17] sc0 sc1")
    e("    s_waitcnt vmcnt(0)")
    e("    v_mov_b32 v13, 0")
    e(f"    ds_write_b32 v13, v12 offset:{LDS2_O}")
    e("    s_waitcnt lgkmcnt(0)")
    e("    s_mov_b64 exec, s[36:37]")
    e("K2_W1:")
    e("    s_barrier")
    e("    v_mov_b32 v13, 0")
    e(f"    ds_read_b32 v12, v13 offset:{LDS2_O}")
    e("    s_waitcnt lgkmcnt(0)")
    e("    v_readfirstlane_b32 s29, v12")
    e("    s_cmp_eq_u32 s29, 31")
    e("    s_cbranch_scc0 K2_END")
    e("    global_load_dwordx2 v[8:9], v10, s[18:19] sc1")
    e("    v_lshrrev_b32 v7, 1, v6")
    e("    global_load_dword v14, v7, s[4:5]")
    e("    s_lshl_b32 s29, s23, 7")
    e("    v_and_b32 v15, 31, v0")
    e("    v_lshlrev_b32 v15, 2, v15")
    e("    v_add_u32 v15, s29, v15")
    e("    global_load_dword v16, v15, s[12:13]")
    e("    s_waitcnt vmcnt(0)")
    e("    v_lshlrev_b32 v17, 16, v14")
    e("    v_and_b32 v18, 0xffff0000, v14")
    e("    v_add_f32 v8, v8, v17")
    e("    v_add_f32 v9, v9, v18")
    e("    v_lshlrev_b32 v17, 16, v16")
    e("    v_and_b32 v18, 0xffff0000, v16")
    e("    v_add_f32 v8, v8, v17")
    e("    v_add_f32 v9, v9, v18")
    e("    v_cvt_pk_bf16_f32 v8, v8, v9")
    e("    global_store_dword v7, v8, s[14:15]")
    e("K2_END:")
    e("    s_endpgm")

def descr(name, vg):
    e(f".amdhsa_kernel {name}")
    e(f"  .amdhsa_next_free_vgpr {vg}")
    e("  .amdhsa_next_free_sgpr 102")
    e(f"  .amdhsa_accum_offset {vg}")
    e("  .amdhsa_group_segment_fixed_size 0")
    e("  .amdhsa_kernarg_size 104")
    e("  .amdhsa_user_sgpr_count 2")
    e("  .amdhsa_user_sgpr_kernarg_segment_ptr 1")
    e("  .amdhsa_system_sgpr_workgroup_id_x 1")
    e(".end_amdhsa_kernel")

header()
k1()
k2()
e('.section .rodata,"a"')
e(".p2align 6")
descr("k1_front_kernel", 256)
e(".p2align 6")
descr(NAME + "_kernel", 128)
open(OUT, "w").write("\n".join(L) + "\n")
print("ok", len(L))
```

```python
import sys,os
VAR=os.environ.get("VAR","")
OUT = os.environ.get("OUTF") or "parallel_sum__sliding_block_cached__dense_activation_gelu__decode.s"
NAME = "parallel_sum__sliding_block_cached__dense_activation_gelu__decode"

L = []
def e(s=""): L.append(s)

WS_QP  = 0
WS_HP  = 0x80000
WS_OP  = 0x100000
WS_ML  = 0x180000
WS_ACC = 0x190000

XN_STRIDE = 1040
LDS_XN = 0
LDS_QP = 8448
LDS_HP = LDS_QP + 8192
LDS_Q  = LDS_HP + 8192
Q_STRIDE = 272
LDS_PO = LDS_Q + 4*Q_STRIDE + 64
LDS_PM = LDS_PO + 8192
K1_LDS = LDS_PM + 256

SCALE_LOG2E = 0.08838834764831845 * 1.4426950408889634

import struct
def f2u(x): return struct.unpack("<I", struct.pack("<f", x))[0]

def nops(n):
    while n > 0:
        k = min(n, 16)
        e(f"    s_nop {k-1}")
        n -= k

def xor_reduce32(v, tmp, op):
    for m in (1, 2, 4, 8, 16):
        e(f"    ds_swizzle_b32 {tmp}, {v} offset:{(m<<10)|0x1f}")
        e(f"    s_waitcnt lgkmcnt(0)")
        e(f"    {op} {v}, {v}, {tmp}")

def gemv_slice(Lreg, A, Dbase, perm0):
    for d in range(4):
        half = d >> 1
        sel = "s20" if (d & 1) == 0 else "s21"
        for p in range(4):
            a = Lreg + (2*p)*2 + half
            b = Lreg + (2*p+1)*2 + half
            e(f"    v_perm_b32 v{perm0+p}, v{b}, v{a}, {sel}")
        e(f"    s_nop 1")
        e(f"    v_mfma_f32_16x16x32_bf16 v[{Dbase+4*d}:{Dbase+4*d+3}], v[{A}:{A+3}], v[{perm0}:{perm0+3}], 0")
        e(f"    s_nop 3")

def header():
    e("; Kernarg: in[0..9], out(80), dbg(88), ws(96)")
    e("; @launch kernel=k0_proj_kernel grid=(256,1,1) block=(320,1,1) lds=%d" % K1_LDS)
    e("; @launch kernel=k1_attn_kernel grid=(256,1,1) block=(320,1,1) lds=%d" % K1_LDS)
    e("; @launch kernel=%s_kernel grid=(256,1,1) block=(256,1,1) lds=%d" % (NAME, K2_LDS))
    e('.amdgcn_target "amdgcn-amd-amdhsa--gfx950"')
    e(".text")

def k1(mode):
    KN = "k0_proj_kernel" if mode==0 else "k1_attn_kernel"
    T = "A" if mode==0 else "B"
    e(f".globl {KN}")
    e(".p2align 8")
    e(f".type {KN},@function")
    e(f"{KN}:")
    e("    s_cmp_ge_u32 s2, 256")
    e("    s_cbranch_scc1 K1_END".replace("K1_","K1"+T+"_"))
    if "empty" in VAR: e("    s_branch K1_END".replace("K1_","K1"+T+"_"))
    e("    s_load_dwordx4 s[4:7], s[0:1], 0      ; x, K")
    e("    s_load_dwordx4 s[8:11], s[0:1], 16    ; V, wq")
    e("    s_load_dwordx2 s[12:13], s[0:1], 48   ; w1")
    e("    s_load_dwordx4 s[16:19], s[0:1], 88")
    e("    s_mov_b32 s20, 0x05040100")
    e("    s_mov_b32 s21, 0x07060302")
    e("    s_lshr_b32 s22, s2, 5                 ; kvh")
    e("    s_and_b32 s23, s2, 31                 ; j")
    e("    s_lshr_b32 s24, s23, 2                ; b")
    e("    s_and_b32 s25, s23, 3                 ; split")
    e("    s_and_b32 s26, s23, 7                 ; colblk")
    e("    s_lshr_b32 s27, s23, 3                ; ks")
    e("    v_and_b32 v1, 63, v0                  ; lane")
    e("    v_lshrrev_b32 v2, 6, v0               ; wave")
    e("    v_lshrrev_b32 v3, 4, v1               ; g")
    e("    v_and_b32 v4, 15, v1                  ; c")
    e("    v_readfirstlane_b32 s28, v2")
    e("    s_waitcnt lgkmcnt(0)")
    e("    s_cmp_eq_u32 s28, 4")
    e("    s_cbranch_scc1 K1_HELPER".replace("K1_","K1"+T+"_"))
    if mode==1: e("    s_branch K1B_NOW1")
    e("    v_lshlrev_b32 v5, 5, v0               ; t*32 (row*1024 + (t&31)*32)")
    e("    global_load_dwordx4 v[8:11], v5, s[4:5]")
    e("    global_load_dwordx4 v[12:15], v5, s[4:5] offset:16")
    e("    s_lshl_b32 s29, s27, 7                ; ks*128")
    e("    s_lshl_b32 s30, s28, 5                ; w*32")
    e("    s_add_u32 s29, s29, s30")
    e("    v_lshlrev_b32 v6, 3, v3               ; g*8")
    e("    v_add_u32 v6, s29, v6")
    e("    v_lshlrev_b32 v7, 13, v6              ; row*8192")
    e("    s_lshl_b32 s30, s22, 10               ; kvh*512*2")
    e("    s_lshl_b32 s31, s26, 7                ; colblk*64*2")
    e("    s_add_u32 s30, s30, s31")
    e("    v_lshlrev_b32 v16, 3, v4              ; c*8 bytes")
    e("    v_add_u32 v7, v7, v16")
    e("    v_add_u32 v7, s30, v7")
    for j in range(8):
        if j:
            e(f"    v_add_u32 v7, 0x2000, v7")
        e(f"    global_load_dwordx2 v[{16+2*j}:{17+2*j}], v7, s[10:11]")
    e("    s_cmp_lt_u32 s2, 112")
    e("    s_cbranch_scc0 K1_NOW1".replace("K1_","K1"+T+"_"))
    e("    s_and_b32 s33, s2, 3                  ; h ks")
    e("    s_lshr_b32 s34, s2, 2                 ; h colblk")
    e("    s_lshl_b32 s29, s33, 7")
    e("    s_lshl_b32 s30, s28, 5")
    e("    s_add_u32 s29, s29, s30")
    e("    v_lshlrev_b32 v6, 3, v3")
    e("    v_add_u32 v6, s29, v6                 ; row")
    e("    s_movk_i32 s35, 3584")
    e("    v_mul_lo_u32 v7, v6, s35")
    e("    s_lshl_b32 s30, s34, 7")
    e("    v_lshlrev_b32 v6, 3, v4")
    e("    v_add_u32 v7, v7, v6")
    e("    v_add_u32 v7, s30, v7")
    for j in range(8):
        if j:
            e(f"    v_add_u32 v7, 0xe00, v7")
        e(f"    global_load_dwordx2 v[{32+2*j}:{33+2*j}], v7, s[12:13]")
    e("K1_NOW1:".replace("K1_","K1"+T+"_"))
    if mode==0: e("    s_branch K1A_AFTERKV")
    e("    s_lshl_b32 s29, s24, 3")
    e("    s_add_u32 s29, s29, s22")
    e("    s_lshl_b32 s29, s29, 20")
    e("    s_lshl_b32 s30, s25, 16               ; split*256*256")
    e("    s_add_u32 s29, s29, s30")
    e("    s_lshl_b32 s30, s28, 14               ; w*64*256")
    e("    s_add_u32 s29, s29, s30")
    e("    s_add_u32 s29, s29, 0xc0000           ; 3072*256")
    if "samekv" in VAR: e("    s_mov_b32 s29, 0")
    e("    s_add_u32 s6, s6, s29")
    e("    s_addc_u32 s7, s7, 0")
    e("    s_add_u32 s8, s8, s29")
    e("    s_addc_u32 s9, s9, 0")
    e("    v_lshlrev_b32 v6, 8, v4")
    e("    v_lshlrev_b32 v7, 4, v3")
    e("    v_add_u32 v6, v6, v7")
    for t in range(4):
        if t:
            e("    v_add_u32 v6, 0x1000, v6")
        for s in range(4):
            r = 64 + (t*4+s)*4
            e(f"    global_load_dwordx4 v[{r}:{r+3}], v6, s[6:7] offset:{s*64}")
    e("    v_lshlrev_b32 v6, 10, v3              ; g*4*256")
    e("    v_lshlrev_b32 v7, 4, v4")
    e("    v_add_u32 v6, v6, v7")
    for u in range(2):
        for jh in range(2):
            if u or jh:
                e("    v_add_u32 v6, 0x1000, v6")
            for jl in range(4):
                r = 128 + (u*8 + jh*4 + jl)*4
                e(f"    global_load_dwordx4 v[{r}:{r+3}], v6, s[8:9] offset:{jl*256}")
    if mode==0: e("K1A_AFTERKV:")
    if mode==1: e("    s_branch K1B_B3")
    e("    s_cmp_lt_u32 s2, 112")
    e("    s_cbranch_scc0 K1_WX2".replace("K1_","K1"+T+"_"))
    e("    s_waitcnt vmcnt(16)")
    e("    s_branch K1_WX3".replace("K1_","K1"+T+"_"))
    e("K1_WX2:".replace("K1_","K1"+T+"_"))
    e("    s_waitcnt vmcnt(8)")
    e("K1_WX3:".replace("K1_","K1"+T+"_"))
    for i in range(8):
        e(f"    v_lshlrev_b32 v{192+2*i}, 16, v{8+i}")
        e(f"    v_and_b32 v{193+2*i}, 0xffff0000, v{8+i}")
    e("    v_add_f32 v208, v192, v193")
    for i in range(2, 16):
        e(f"    v_add_f32 v208, v208, v{192+i}")
    xor_reduce32("v208", "v209", "v_add_f32")
    e("    v_mul_f32 v208, 0x3b000000, v208      ; /512")
    for i in range(16):
        e(f"    v_sub_f32 v{192+i}, v{192+i}, v208")
    e("    v_mul_f32 v210, v192, v192")
    for i in range(1, 16):
        e(f"    v_fmac_f32 v210, v{192+i}, v{192+i}")
    xor_reduce32("v210", "v209", "v_add_f32")
    e("    v_mov_b32 v211, 0x3727c5ac             ; 1e-5")
    e("    v_fmac_f32 v211, 0x3b000000, v210")
    e("    v_rsq_f32 v211, v211")
    e("    s_nop 0")
    for i in range(16):
        e(f"    v_mul_f32 v{192+i}, v{192+i}, v211")
    for i in range(8):
        e(f"    v_cvt_pk_bf16_f32 v{8+i}, v{192+2*i}, v{193+2*i}")
    e("    v_lshrrev_b32 v5, 5, v0")
    e(f"    v_mul_u32_u24 v5, {XN_STRIDE}, v5")
    e("    v_and_b32 v6, 31, v0")
    e("    v_lshlrev_b32 v6, 5, v6")
    e("    v_add_u32 v5, v5, v6")
    e(f"    ds_write_b128 v5, v[8:11] offset:{LDS_XN}")
    e(f"    ds_write_b128 v5, v[12:15] offset:{LDS_XN+16}")
    e("    s_waitcnt lgkmcnt(0)")
    e("    s_barrier                              ; B1")
    e("    v_and_b32 v5, 7, v4")
    e(f"    v_mul_u32_u24 v5, {XN_STRIDE}, v5")
    e("    v_lshlrev_b32 v6, 4, v3")
    e("    v_add_u32 v5, v5, v6")
    e("    s_lshl_b32 s29, s28, 6                ; w*32*2")
    e("    v_add_u32 v5, s29, v5")
    e("    s_lshl_b32 s30, s27, 8                ; ks*128*2")
    e("    v_add_u32 v6, s30, v5")
    e(f"    ds_read_b128 v[192:195], v6 offset:{LDS_XN}")
    e("    s_cmp_lt_u32 s2, 112")
    e("    s_cbranch_scc0 K1_WQ2".replace("K1_","K1"+T+"_"))
    e("    s_waitcnt vmcnt(8) lgkmcnt(0)")
    e("    s_branch K1_WQ3".replace("K1_","K1"+T+"_"))
    e("K1_WQ2:".replace("K1_","K1"+T+"_"))
    e("    s_waitcnt vmcnt(0) lgkmcnt(0)")
    e("K1_WQ3:".replace("K1_","K1"+T+"_"))
    gemv_slice(16, 192, 200, 196)
    nops(8)
    e("    v_lshlrev_b32 v7, 10, v3              ; g*4*256")
    e("    v_lshlrev_b32 v6, 4, v4               ; 4c*4")
    e("    v_add_u32 v7, v7, v6")
    e("    s_lshl_b32 s29, s28, 11               ; w*2048")
    e("    v_add_u32 v7, s29, v7")
    e("    v_cmp_gt_u32 vcc, 32, v1")
    e("    s_and_saveexec_b64 s[36:37], vcc")
    for r in range(4):
        for d in range(4):
            e(f"    ds_write_b32 v7, v{200+4*d+r} offset:{LDS_QP + r*256 + d*4}")
    e("    s_mov_b64 exec, s[36:37]")
    e("    s_cmp_lt_u32 s2, 112")
    e("    s_cbranch_scc0 K1_NOH".replace("K1_","K1"+T+"_"))
    e("    s_lshl_b32 s30, s33, 8")
    e("    v_add_u32 v6, s30, v5")
    e(f"    ds_read_b128 v[192:195], v6 offset:{LDS_XN}")
    e("    s_waitcnt vmcnt(0) lgkmcnt(0)")
    gemv_slice(32, 192, 200, 196)
    nops(8)
    e("    s_and_saveexec_b64 s[36:37], vcc")
    for r in range(4):
        for d in range(4):
            e(f"    ds_write_b32 v7, v{200+4*d+r} offset:{LDS_HP + r*256 + d*4}")
    e("    s_mov_b64 exec, s[36:37]")
    e("K1_NOH:".replace("K1_","K1"+T+"_"))
    e("    s_waitcnt lgkmcnt(0)")
    e("    s_barrier                              ; B2")
    if mode==0: e("    s_endpgm")
    if mode==1: e("K1B_B3:")
    e("    s_barrier                              ; B3 (q ready)")
    e("    v_and_b32 v5, 3, v4")
    e(f"    v_mul_u32_u24 v5, {Q_STRIDE}, v5")
    e("    v_lshlrev_b32 v6, 4, v3")
    e("    v_add_u32 v5, v5, v6")
    for s in range(4):
        e(f"    ds_read_b128 v[{8+4*s}:{11+4*s}], v5 offset:{LDS_Q + s*64}")
    e("    s_waitcnt vmcnt(16) lgkmcnt(0)")
    for t in range(4):
        for s in range(4):
            r = 64 + (t*4+s)*4
            c = "0" if s == 0 else f"v[{24+4*t}:{27+4*t}]"
            e(f"    v_mfma_f32_16x16x32_bf16 v[{24+4*t}:{27+4*t}], v[{r}:{r+3}], v[{8+4*s}:{11+4*s}], {c}")
    nops(10)
    e("    v_max_f32 v40, v24, v25")
    for i in range(2, 16):
        e(f"    v_max_f32 v40, v40, v{24+i}")
    e("    v_lshlrev_b32 v41, 2, v1")
    e("    v_xor_b32 v42, 64, v41                 ; lane^16")
    e("    v_xor_b32 v43, 128, v41                ; lane^32")
    e("    ds_bpermute_b32 v44, v42, v40")
    e("    s_waitcnt lgkmcnt(0)")
    e("    v_max_f32 v40, v40, v44")
    e("    ds_bpermute_b32 v44, v43, v40")
    e("    s_waitcnt lgkmcnt(0)")
    e("    v_max_f32 v40, v40, v44")
    e(f"    v_mov_b32 v45, 0x{f2u(SCALE_LOG2E):08x}")
    e("    v_mul_f32 v46, v40, v45")
    for i in range(16):
        e(f"    v_fma_f32 v{24+i}, v{24+i}, v45, -v46")
    for i in range(16):
        e(f"    v_exp_f32 v{24+i}, v{24+i}")
    e("    s_nop 0")
    e("    v_add_f32 v47, v24, v25")
    for i in range(2, 16):
        e(f"    v_add_f32 v47, v47, v{24+i}")
    e("    ds_bpermute_b32 v44, v42, v47")
    e("    s_waitcnt lgkmcnt(0)")
    e("    v_add_f32 v47, v47, v44")
    e("    ds_bpermute_b32 v44, v43, v47")
    e("    s_waitcnt lgkmcnt(0)")
    e("    v_add_f32 v47, v47, v44                ; l")
    for u in range(2):
        for hh in range(2):
            t = 2*u + hh
            e(f"    v_cvt_pk_bf16_f32 v{48+4*u+2*hh}, v{24+4*t}, v{25+4*t}")
            e(f"    v_cvt_pk_bf16_f32 v{49+4*u+2*hh}, v{26+4*t}, v{27+4*t}")
    e("    s_waitcnt vmcnt(0)")
    for u in range(2):
        for d in range(8):
            comp = d >> 1
            sel = "s20" if (d & 1) == 0 else "s21"
            for p in range(4):
                a = 128 + (u*8 + 2*p)*4 + comp
                b = 128 + (u*8 + 2*p+1)*4 + comp
                e(f"    v_perm_b32 v{56+p}, v{b}, v{a}, {sel}")
            e("    s_nop 1")
            c = "0" if u == 0 else f"v[{192+4*d}:{195+4*d}]"
            e(f"    v_mfma_f32_16x16x32_bf16 v[{192+4*d}:{195+4*d}], v[{48+4*u}:{51+4*u}], v[56:59], {c}")
            e("    s_nop 3")
    nops(10)
    e("    v_lshlrev_b32 v5, 5, v1                ; c*32 bytes")
    e("    s_lshl_b32 s29, s28, 11")
    e("    v_add_u32 v5, s29, v5")
    e("    v_cmp_gt_u32 vcc, 16, v1")
    e("    s_and_saveexec_b64 s[36:37], vcc")
    for r in range(4):
        for d in range(8):
            e(f"    ds_write_b32 v5, v{192+4*d+r} offset:{LDS_PO + r*512 + d*4}")
    e("    v_cmp_gt_u32 vcc, 4, v1")
    e("    s_and_b64 exec, exec, vcc")
    e("    v_lshlrev_b32 v5, 3, v1")
    e("    s_lshl_b32 s29, s28, 5")
    e("    v_add_u32 v5, s29, v5")
    e("    v_mov_b32 v49, v47")
    e("    v_mov_b32 v48, v40")
    e(f"    ds_write_b64 v5, v[48:49] offset:{LDS_PM}")
    e("    s_mov_b64 exec, s[36:37]")
    e("    s_waitcnt lgkmcnt(0)")
    e("    s_barrier                              ; B4")
    e("    s_cmp_ge_u32 s28, 2")
    e("    s_cbranch_scc1 K1_END".replace("K1_","K1"+T+"_"))
    e("    v_lshrrev_b32 v5, 5, v0                ; head")
    e("    v_lshlrev_b32 v6, 3, v5")
    for w in range(4):
        e(f"    ds_read_b64 v[{8+2*w}:{9+2*w}], v6 offset:{LDS_PM + w*32}")
    e("    v_lshlrev_b32 v7, 9, v5")
    e("    v_and_b32 v16, 31, v0")
    e("    v_lshlrev_b32 v16, 4, v16")
    e("    v_add_u32 v7, v7, v16")
    for w in range(4):
        e(f"    ds_read_b128 v[{20+4*w}:{23+4*w}], v7 offset:{LDS_PO + w*2048}")
    e("    s_waitcnt lgkmcnt(0)")
    e("    v_max_f32 v17, v8, v10")
    e("    v_max3_f32 v17, v17, v12, v14          ; M")
    e(f"    v_mov_b32 v45, 0x{f2u(SCALE_LOG2E):08x}")
    for w in range(4):
        e(f"    v_sub_f32 v{36+w}, v{8+2*w}, v17")
        e(f"    v_mul_f32 v{36+w}, v{36+w}, v45")
    for w in range(4):
        e(f"    v_exp_f32 v{36+w}, v{36+w}")
    e("    s_nop 0")
    e("    v_mul_f32 v19, v9, v36")
    for w in range(1, 4):
        e(f"    v_fmac_f32 v19, v{9+2*w}, v{36+w}")
    for k in range(4):
        e(f"    v_mul_f32 v{40+k}, v{20+k}, v36")
        for w in range(1, 4):
            e(f"    v_fmac_f32 v{40+k}, v{20+4*w+k}, v{36+w}")
    e("    v_mov_b32 v18, v17")
    e("    s_lshl_b32 s29, s24, 5")
    e("    s_lshl_b32 s30, s22, 2")
    e("    s_add_u32 s29, s29, s30")
    e("    s_lshl_b32 s29, s29, 2")
    e("    s_add_u32 s29, s29, s25")
    e("    v_lshlrev_b32 v6, 2, v5")
    e("    v_add_u32 v6, s29, v6")
    e("    v_lshlrev_b32 v7, 9, v6")
    e("    v_add_u32 v7, v7, v16")
    e(f"    v_add_u32 v7, 0x{WS_OP:x}, v7")
    e("    global_store_dwordx4 v7, v[40:43], s[18:19]")
    e("    v_lshlrev_b32 v7, 3, v6")
    e(f"    v_add_u32 v7, 0x{WS_ML:x}, v7")
    e("    v_and_b32 v16, 31, v0")
    e("    v_cmp_eq_u32 vcc, 0, v16")
    e("    s_and_saveexec_b64 s[36:37], vcc")
    e("    global_store_dwordx2 v7, v[18:19], s[18:19]")
    e("    s_endpgm")
    e("K1_HELPER:".replace("K1_","K1"+T+"_"))
    if mode==1: e("    s_branch K1B_POLLED")
    e("    s_lshl_b32 s29, s2, 6")
    e("    v_lshlrev_b32 v5, 2, v1")
    e("    v_add_u32 v5, s29, v5")
    e(f"    v_add_u32 v5, 0x{WS_ACC:x}, v5")
    e("    v_mov_b32 v6, 0")
    e("    v_cmp_gt_u32 vcc, 16, v1")
    e("    s_and_saveexec_b64 s[36:37], vcc")
    e("    global_store_dword v5, v6, s[18:19]")
    e("    s_mov_b64 exec, s[36:37]")
    e("    s_barrier                              ; B1")
    e("    s_barrier                              ; B2")
    e("    v_lshlrev_b32 v5, 5, v1")
    for w in range(4):
        e(f"    ds_read_b128 v[{8+8*w}:{11+8*w}], v5 offset:{LDS_QP + w*2048}")
        e(f"    ds_read_b128 v[{12+8*w}:{15+8*w}], v5 offset:{LDS_QP + w*2048 + 16}")
    e("    s_waitcnt lgkmcnt(0)")
    for k in range(8):
        e(f"    v_add_f32 v{8+k}, v{8+k}, v{16+k}")
        e(f"    v_add_f32 v{24+k}, v{24+k}, v{32+k}")
        e(f"    v_add_f32 v{8+k}, v{8+k}, v{24+k}")
    e("    s_lshl_b32 s29, s22, 2")
    e("    s_add_u32 s29, s29, s27")
    e("    s_lshl_b32 s29, s29, 14")
    e("    s_lshl_b32 s30, s26, 8")
    e("    s_add_u32 s29, s29, s30")
    e("    v_lshrrev_b32 v6, 3, v1")
    e("    v_lshlrev_b32 v6, 11, v6")
    e("    v_and_b32 v7, 7, v1")
    e("    v_lshlrev_b32 v7, 5, v7")
    e("    v_add_u32 v6, v6, v7")
    e("    v_add_u32 v6, s29, v6")
    e("    global_store_dwordx4 v6, v[8:11], s[18:19]")
    e("    global_store_dwordx4 v6, v[12:15], s[18:19] offset:16")
    e("    s_cmp_lt_u32 s2, 112")
    e("    s_cbranch_scc0 K1_H_NOH".replace("K1_","K1"+T+"_"))
    for w in range(4):
        e(f"    ds_read_b128 v[{8+8*w}:{11+8*w}], v5 offset:{LDS_HP + w*2048}")
        e(f"    ds_read_b128 v[{12+8*w}:{15+8*w}], v5 offset:{LDS_HP + w*2048 + 16}")
    e("    s_waitcnt lgkmcnt(0)")
    for k in range(8):
        e(f"    v_add_f32 v{8+k}, v{8+k}, v{16+k}")
        e(f"    v_add_f32 v{24+k}, v{24+k}, v{32+k}")
        e(f"    v_add_f32 v{8+k}, v{8+k}, v{24+k}")
    e("    s_and_b32 s33, s2, 3")
    e("    s_lshr_b32 s34, s2, 2")
    e("    s_mul_i32 s29, s33, 57344")
    e("    s_lshl_b32 s30, s34, 8")
    e("    s_add_u32 s29, s29, s30")
    e(f"    s_add_u32 s29, s29, 0x{WS_HP:x}")
    e("    v_lshrrev_b32 v6, 3, v1")
    e("    v_mul_u32_u24 v6, 7168, v6")
    e("    v_add_u32 v6, v6, v7")
    e("    v_add_u32 v6, s29, v6")
    e("    global_store_dwordx4 v6, v[8:11], s[18:19]")
    e("    global_store_dwordx4 v6, v[12:15], s[18:19] offset:16")
    e("K1_H_NOH:".replace("K1_","K1"+T+"_"))
    e("    s_waitcnt vmcnt(0)")
    if mode==0: e("    s_endpgm")
    e("    s_lshl_b32 s29, s22, 5")
    e("    v_mov_b32 v5, s29")
    e("    v_mov_b32 v6, 1")
    e("    v_cmp_eq_u32 vcc, 0, v1")
    e("    s_and_saveexec_b64 s[36:37], vcc")
    e("    global_atomic_add v5, v6, s[16:17]")
    e("    s_mov_b64 exec, s[36:37]")
    e("    s_mov_b32 s38, 200000")
    if "nopoll" in VAR: e("    s_branch K1_POLLED".replace("K1_","K1"+T+"_"))
    e("K1_POLL:".replace("K1_","K1"+T+"_"))
    e("    global_load_dword v6, v5, s[16:17]")
    e("    s_waitcnt vmcnt(0)")
    e("    v_readfirstlane_b32 s39, v6")
    e("    s_cmp_ge_u32 s39, 32")
    e("    s_cbranch_scc1 K1_POLLED".replace("K1_","K1"+T+"_"))
    e("    s_sleep 2")
    e("    s_sub_u32 s38, s38, 1")
    e("    s_cmp_lg_u32 s38, 0")
    e("    s_cbranch_scc1 K1_POLL".replace("K1_","K1"+T+"_"))
    e("K1_POLLED:".replace("K1_","K1"+T+"_"))
    e("    s_lshl_b32 s29, s22, 16")
    e("    s_lshl_b32 s30, s24, 11")
    e("    s_add_u32 s29, s29, s30")
    e("    v_lshlrev_b32 v5, 5, v1")
    e("    v_add_u32 v5, s29, v5")
    for ks in range(4):
        e(f"    global_load_dwordx4 v[{8+8*ks}:{11+8*ks}], v5, s[18:19]")
        e(f"    global_load_dwordx4 v[{12+8*ks}:{15+8*ks}], v5, s[18:19] offset:16")
        if ks < 3:
            e("    v_add_u32 v5, 0x4000, v5")
    e("    s_waitcnt vmcnt(0)")
    for k in range(8):
        e(f"    v_add_f32 v{8+k}, v{8+k}, v{16+k}")
        e(f"    v_add_f32 v{24+k}, v{24+k}, v{32+k}")
        e(f"    v_add_f32 v{8+k}, v{8+k}, v{24+k}")
    for k in range(4):
        e(f"    v_cvt_pk_bf16_f32 v{40+k}, v{8+2*k}, v{9+2*k}")
    e(f"    v_mul_u32_u24 v5, {Q_STRIDE}, v3")
    e("    v_lshlrev_b32 v6, 4, v4")
    e("    v_add_u32 v5, v5, v6")
    e(f"    ds_write_b128 v5, v[40:43] offset:{LDS_Q}")
    e("    s_waitcnt lgkmcnt(0)")
    e("    s_barrier                              ; B3")
    e("    s_barrier                              ; B4")
    e("K1_END:".replace("K1_","K1"+T+"_"))
    e("    s_endpgm")

O_STRIDE = 272
LDS2_O = 0
LDS2_H = 8*O_STRIDE
H_STRIDE = 144
LDS2_P = LDS2_H + 8*H_STRIDE
K2_LDS = LDS2_P + 6*2048

def k2():
    e(f".globl {NAME}_kernel")
    e(".p2align 8")
    e(f".type {NAME}_kernel,@function")
    e(f"{NAME}_kernel:")
    e("    s_cmp_ge_u32 s2, 256")
    e("    s_cbranch_scc1 K2_END")
    e("    s_load_dwordx2 s[4:5], s[0:1], 0      ; x")
    e("    s_load_dwordx2 s[6:7], s[0:1], 32     ; wo")
    e("    s_load_dwordx4 s[8:11], s[0:1], 56    ; b1, w2")
    e("    s_load_dwordx4 s[12:15], s[0:1], 72   ; b2, out")
    e("    s_load_dwordx4 s[16:19], s[0:1], 88")
    e("    s_mov_b32 s20, 0x05040100")
    e("    s_mov_b32 s21, 0x07060302")
    e("    s_lshr_b32 s22, s2, 3                 ; h")
    e("    s_and_b32 s23, s2, 7                  ; nblk")
    e("    v_and_b32 v1, 63, v0")
    e("    v_lshrrev_b32 v2, 6, v0")
    e("    v_lshrrev_b32 v3, 4, v1               ; g")
    e("    v_and_b32 v4, 15, v1                  ; c")
    e("    v_readfirstlane_b32 s28, v2")
    e("    s_waitcnt lgkmcnt(0)")
    e("    s_lshl_b32 s29, s22, 7")
    e("    s_lshl_b32 s30, s28, 5")
    e("    s_add_u32 s29, s29, s30")
    e("    v_lshlrev_b32 v6, 3, v3")
    e("    v_add_u32 v6, s29, v6")
    e("    v_lshlrev_b32 v7, 10, v6")
    e("    s_lshl_b32 s30, s23, 7")
    e("    v_lshlrev_b32 v5, 3, v4")
    e("    v_add_u32 v7, v7, v5")
    e("    v_add_u32 v7, s30, v7")
    for j in range(8):
        if j == 4:
            e("    v_add_u32 v7, 0x1000, v7")
        e(f"    global_load_dwordx2 v[{16+2*j}:{17+2*j}], v7, s[6:7] offset:{(j&3)*1024}")
    e("    s_mul_i32 s29, s22, 56")
    e("    s_lshl_b32 s31, s28, 5")
    e("    s_add_u32 s29, s29, s31")
    e("    v_lshlrev_b32 v6, 3, v3")
    e("    v_add_u32 v6, s29, v6")
    for j in range(8):
        e(f"    v_add_u32 v7, {j}, v6")
        e("    v_min_u32 v7, 1791, v7")
        e("    v_lshlrev_b32 v7, 10, v7")
        e("    v_add_u32 v7, v7, v5")
        e("    v_add_u32 v7, s30, v7")
        e(f"    global_load_dwordx2 v[{32+2*j}:{33+2*j}], v7, s[10:11]")
    e("    v_lshrrev_b32 v8, 5, v0                ; b")
    e("    v_and_b32 v9, 31, v0")
    e("    v_lshlrev_b32 v10, 5, v8")
    e("    v_add_u32 v10, s22, v10")
    e("    v_lshlrev_b32 v10, 2, v10              ; rec0")
    e("    v_lshlrev_b32 v11, 9, v10")
    e("    v_lshlrev_b32 v12, 4, v9")
    e("    v_add_u32 v11, v11, v12")
    e(f"    v_add_u32 v11, 0x{WS_OP:x}, v11")
    for sp in range(4):
        e(f"    global_load_dwordx4 v[{48+4*sp}:{51+4*sp}], v11, s[18:19] offset:{sp*512}")
    e("    v_lshlrev_b32 v12, 3, v10")
    e(f"    v_add_u32 v12, 0x{WS_ML:x}, v12")
    e("    global_load_dwordx4 v[64:67], v12, s[18:19]")
    e("    global_load_dwordx4 v[68:71], v12, s[18:19] offset:16")
    e("    s_mul_i32 s29, s22, 224")
    e(f"    s_add_u32 s29, s29, 0x{WS_HP:x}")
    e("    v_mul_u32_u24 v13, 7168, v8")
    e("    v_min_u32 v14, 27, v9")
    e("    v_lshlrev_b32 v14, 3, v14")
    e("    v_add_u32 v13, v13, v14")
    e("    v_add_u32 v13, s29, v13")
    for ks in range(4):
        e(f"    global_load_dwordx2 v[{72+2*ks}:{73+2*ks}], v13, s[18:19]")
        if ks < 3:
            e("    v_add_u32 v13, 0xe000, v13")
    e("    s_mul_i32 s29, s22, 112")
    e("    v_lshrrev_b32 v14, 1, v14")
    e("    v_add_u32 v14, s29, v14")
    e("    global_load_dword v80, v14, s[8:9]     ; b1 pair")
    e("    s_waitcnt vmcnt(5)")
    e("    v_max_f32 v84, v64, v66")
    e("    v_max3_f32 v84, v84, v68, v70")
    e(f"    v_mov_b32 v85, 0x{f2u(SCALE_LOG2E):08x}")
    for sp in range(4):
        e(f"    v_sub_f32 v{86+sp}, v{64+2*sp}, v84")
        e(f"    v_mul_f32 v{86+sp}, v{86+sp}, v85")
    for sp in range(4):
        e(f"    v_exp_f32 v{86+sp}, v{86+sp}")
    e("    s_nop 0")
    e("    v_mul_f32 v90, v65, v86")
    for sp in range(1, 4):
        e(f"    v_fmac_f32 v90, v{65+2*sp}, v{86+sp}")
    e("    v_rcp_f32 v90, v90")
    for k in range(4):
        e(f"    v_mul_f32 v{92+k}, v{48+k}, v86")
        for sp in range(1, 4):
            e(f"    v_fmac_f32 v{92+k}, v{48+4*sp+k}, v{86+sp}")
    for k in range(4):
        e(f"    v_mul_f32 v{92+k}, v{92+k}, v90")
    e("    v_cvt_pk_bf16_f32 v92, v92, v93")
    e("    v_cvt_pk_bf16_f32 v93, v94, v95")
    e(f"    v_mul_u32_u24 v11, {O_STRIDE}, v8")
    e("    v_lshlrev_b32 v12, 3, v9")
    e("    v_add_u32 v11, v11, v12")
    e(f"    ds_write_b64 v11, v[92:93] offset:{LDS2_O}")
    e("    s_waitcnt vmcnt(0)")
    e("    v_add_f32 v72, v72, v74")
    e("    v_add_f32 v73, v73, v75")
    e("    v_add_f32 v76, v76, v78")
    e("    v_add_f32 v77, v77, v79")
    e("    v_add_f32 v72, v72, v76")
    e("    v_add_f32 v73, v73, v77")
    e("    v_lshlrev_b32 v81, 16, v80")
    e("    v_and_b32 v82, 0xffff0000, v80")
    e("    v_add_f32 v72, v72, v81")
    e("    v_add_f32 v73, v73, v82")
    e(f"    v_mov_b32 v81, 0x{f2u(0.044715):08x}")
    e(f"    v_mov_b32 v82, 0x{f2u(-2*0.7978845608028654*1.4426950408889634):08x}")
    for k in range(2):
        e(f"    v_mul_f32 v{74+k}, v{72+k}, v{72+k}")
        e(f"    v_mul_f32 v{74+k}, v{74+k}, v81")
        e(f"    v_fma_f32 v{74+k}, v{74+k}, v{72+k}, v{72+k}")
        e(f"    v_mul_f32 v{74+k}, v{74+k}, v82")
        e(f"    v_exp_f32 v{74+k}, v{74+k}")
        e("    s_nop 0")
        e(f"    v_add_f32 v{74+k}, 1.0, v{74+k}")
        e(f"    v_rcp_f32 v{74+k}, v{74+k}")
        e("    s_nop 0")
        e(f"    v_mul_f32 v{72+k}, v{72+k}, v{74+k}")
    e("    v_cvt_pk_bf16_f32 v72, v72, v73")
    e("    v_mov_b32 v73, 0")
    e(f"    v_mul_u32_u24 v11, {H_STRIDE}, v8")
    e("    v_lshlrev_b32 v12, 2, v9")
    e("    v_add_u32 v11, v11, v12")
    e("    v_cmp_gt_u32 vcc, 28, v9")
    e("    v_cndmask_b32 v72, v73, v72, vcc")
    e(f"    ds_write_b32 v11, v72 offset:{LDS2_H}")
    e("    s_waitcnt lgkmcnt(0)")
    e("    s_barrier")
    e("    v_and_b32 v5, 7, v4")
    e(f"    v_mul_u32_u24 v6, {O_STRIDE}, v5")
    e("    v_lshlrev_b32 v7, 4, v3")
    e("    v_add_u32 v6, v6, v7")
    e("    s_lshl_b32 s29, s28, 6")
    e("    v_add_u32 v6, s29, v6")
    e(f"    ds_read_b128 v[100:103], v6 offset:{LDS2_O}")
    e(f"    v_mul_u32_u24 v6, {H_STRIDE}, v5")
    e("    v_add_u32 v6, v6, v7")
    e("    v_add_u32 v6, s29, v6")
    e(f"    ds_read_b128 v[104:107], v6 offset:{LDS2_H}")
    e("    s_waitcnt lgkmcnt(0)")
    gemv_slice(16, 100, 112, 108)
    nops(8)
    e("    v_lshlrev_b32 v7, 10, v3")
    e("    v_lshlrev_b32 v6, 4, v4")
    e("    v_add_u32 v7, v7, v6")
    e("    s_lshl_b32 s29, s28, 11")
    e("    v_add_u32 v7, s29, v7")
    e("    v_cmp_gt_u32 vcc, 32, v1")
    e("    s_and_saveexec_b64 s[36:37], vcc")
    for r in range(4):
        for d in range(4):
            e(f"    ds_write_b32 v7, v{112+4*d+r} offset:{LDS2_P + r*256 + d*4}")
    e("    s_mov_b64 exec, s[36:37]")
    e("    s_cmp_ge_u32 s28, 2")
    e("    s_cbranch_scc1 K2_NOW2")
    gemv_slice(32, 104, 112, 108)
    nops(8)
    e("    s_and_saveexec_b64 s[36:37], vcc")
    for r in range(4):
        for d in range(4):
            e(f"    ds_write_b32 v7, v{112+4*d+r} offset:{LDS2_P + 4*2048 + r*256 + d*4}")
    e("    s_mov_b64 exec, s[36:37]")
    e("K2_NOW2:")
    e("    s_waitcnt lgkmcnt(0)")
    e("    s_barrier")
    e("    v_lshlrev_b32 v5, 3, v0")
    for p in range(6):
        e(f"    ds_read_b64 v[{8+2*p}:{9+2*p}], v5 offset:{LDS2_P + p*2048}")
    e("    s_waitcnt lgkmcnt(0)")
    for p in range(1, 6):
        e(f"    v_add_f32 v8, v8, v{8+2*p}")
        e(f"    v_add_f32 v9, v9, v{9+2*p}")
    e("    v_lshrrev_b32 v6, 5, v0")
    e("    v_lshlrev_b32 v6, 11, v6               ; b*512*4")
    e("    v_and_b32 v7, 31, v0")
    e("    v_lshlrev_b32 v7, 3, v7")
    e("    v_add_u32 v6, v6, v7")
    e("    s_lshl_b32 s29, s23, 8")
    e("    v_add_u32 v6, s29, v6")
    e(f"    v_add_u32 v10, 0x{WS_ACC:x}, v6")
    e("    global_atomic_add_f32 v10, v8, s[18:19] sc1")
    e("    global_atomic_add_f32 v10, v9, s[18:19] offset:4 sc1")
    e("    s_waitcnt vmcnt(0)")
    e("    s_barrier")
    e("    s_cmp_lg_u32 s28, 0")
    e("    s_cbranch_scc1 K2_W1")
    e("    s_lshl_b32 s29, s23, 5")
    e("    v_mov_b32 v11, s29")
    e("    v_mov_b32 v12, 1")
    e("    v_cmp_eq_u32 vcc, 0, v1")
    e("    s_and_saveexec_b64 s[36:37], vcc")
    e("    global_atomic_add v12, v11, v12, s[16:17] sc0 sc1")
    e("    s_waitcnt vmcnt(0)")
    e("    v_mov_b32 v13, 0")
    e(f"    ds_write_b32 v13, v12 offset:{LDS2_O}")
    e("    s_waitcnt lgkmcnt(0)")
    e("    s_mov_b64 exec, s[36:37]")
    e("K2_W1:")
    e("    s_barrier")
    e("    v_mov_b32 v13, 0")
    e(f"    ds_read_b32 v12, v13 offset:{LDS2_O}")
    e("    s_waitcnt lgkmcnt(0)")
    e("    v_readfirstlane_b32 s29, v12")
    e("    s_cmp_eq_u32 s29, 31")
    e("    s_cbranch_scc0 K2_END")
    e("    global_load_dwordx2 v[8:9], v10, s[18:19] sc1")
    e("    v_lshrrev_b32 v7, 1, v6")
    e("    global_load_dword v14, v7, s[4:5]")
    e("    s_lshl_b32 s29, s23, 7")
    e("    v_and_b32 v15, 31, v0")
    e("    v_lshlrev_b32 v15, 2, v15")
    e("    v_add_u32 v15, s29, v15")
    e("    global_load_dword v16, v15, s[12:13]")
    e("    s_waitcnt vmcnt(0)")
    e("    v_lshlrev_b32 v17, 16, v14")
    e("    v_and_b32 v18, 0xffff0000, v14")
    e("    v_add_f32 v8, v8, v17")
    e("    v_add_f32 v9, v9, v18")
    e("    v_lshlrev_b32 v17, 16, v16")
    e("    v_and_b32 v18, 0xffff0000, v16")
    e("    v_add_f32 v8, v8, v17")
    e("    v_add_f32 v9, v9, v18")
    e("    v_cvt_pk_bf16_f32 v8, v8, v9")
    e("    global_store_dword v7, v8, s[14:15]")
    e("K2_END:")
    e("    s_endpgm")

def descr(name, vg):
    e(f".amdhsa_kernel {name}")
    e(f"  .amdhsa_next_free_vgpr {vg}")
    e("  .amdhsa_next_free_sgpr 102")
    e(f"  .amdhsa_accum_offset {vg}")
    e("  .amdhsa_group_segment_fixed_size 0")
    e("  .amdhsa_kernarg_size 104")
    e("  .amdhsa_user_sgpr_count 2")
    e("  .amdhsa_user_sgpr_kernarg_segment_ptr 1")
    e("  .amdhsa_system_sgpr_workgroup_id_x 1")
    e(".end_amdhsa_kernel")

header()
k1(0)
k1(1)
k2()
e('.section .rodata,"a"')
e(".p2align 6")
descr("k0_proj_kernel", 256)
e(".p2align 6")
descr("k1_attn_kernel", 256)
e(".p2align 6")
descr(NAME + "_kernel", 128)
open(OUT, "w").write("\n".join(L) + "\n")
print("ok", len(L))
```
